```python
import torch

def _softmax(x, axis=-1):
    return torch.softmax(x, dim=axis)
def _gelu(x):
    return torch.nn.functional.gelu(x, approximate="tanh")
def _silu(x):
    return torch.nn.functional.silu(x)
def _sigmoid(x):
    return torch.sigmoid(x)
def _layernorm(x, axis=-1, eps=1e-5):
    m = x.mean(dim=axis, keepdim=True)
    v = x.var(dim=axis, keepdim=True, unbiased=False)
    return (x - m) / torch.sqrt(v + eps)
def _scatter_add(tgt, idx, src, axis=0):
    return tgt.clone().index_add_(axis, idx, src)
def _segment_sum(src, seg, n):
    out = torch.zeros((n,) + src.shape[1:], dtype=src.dtype)
    return out.index_add_(0, seg, src)
def _pad(x, pw):
    flat = tuple(v for pair in reversed(pw) for v in pair)
    return torch.nn.functional.pad(x, flat)

kernel_name = 'gated_mix__grouped_kv_mqa__dense_activation_silu__prompt'

def setup_inputs():

    _w = (lambda a: (lambda t: t.to(torch.bfloat16) if t.is_floating_point() else t)(torch.as_tensor(a)))
    def _A_setup():
        B, S, D, H = 1, 2048, 512, 32
        Dh = D // H
        return {
            "x": _w((lambda *s: torch.randn(*s, dtype=torch.bfloat16) * 0.05)(B, S, D)),
            "wq": _w((lambda *s: torch.randn(*s, dtype=torch.bfloat16) * 0.8)(D, H * Dh)),
            "wk": _w((lambda *s: torch.randn(*s, dtype=torch.bfloat16) * 0.8)(D, Dh)),
            "wv": _w((lambda *s: torch.randn(*s, dtype=torch.bfloat16) * 0.05)(D, Dh)),
            "wo": _w((lambda *s: torch.randn(*s, dtype=torch.bfloat16) * 0.05)(H * Dh, D)),
        }
    _A_in = _A_setup()

    def _B_setup():
        B, S, D, F = 1, 2048, 512, 1376
        return {
            "x": _w((lambda *s: torch.randn(*s, dtype=torch.bfloat16) * 0.05)(B, S, D)),
            "w1": _w((lambda *s: torch.randn(*s, dtype=torch.bfloat16) * 3.2)(D, F) * (D ** -0.5)),
            "w2": _w((lambda *s: torch.randn(*s, dtype=torch.bfloat16) * 0.1)(F, D) * (F ** -0.5)),
        }
    _B_in = _B_setup()

    return {
        "A_x": _A_in["x"],
        "A_wq": _A_in["wq"],
        "A_wk": _A_in["wk"],
        "A_wv": _A_in["wv"],
        "A_wo": _A_in["wo"],
        "B_x": _B_in["x"],
        "B_w1": _B_in["w1"],
        "B_w2": _B_in["w2"],
        "gate_w": _w((lambda *s: torch.randn(*s, dtype=torch.bfloat16) * 0.05)(512) * 16.0),
    }

def reference(A_x, A_wq, A_wk, A_wv, A_wo, B_x, B_w1, B_w2, gate_w):
    def _A_ref(x, wq, wk, wv, wo):
        B, S, D = x.shape
        H = 32
        Dh = D // H
        q = (lambda x, *d: x.permute(*d))((x @ wq).reshape(B, S, H, Dh), 0, 2, 1, 3)
        k = x @ wk
        v = x @ wv
        scores = torch.einsum("bhqd,bkd->bhqk", q, k) * (Dh ** -0.5)
        p = _softmax(scores, axis=-1)
        o = torch.einsum("bhqk,bkd->bhqd", p, v)
        return (lambda x, *d: x.permute(*d))(o, 0, 2, 1, 3).reshape(B, S, H * Dh) @ wo

    def _B_ref(x, w1, w2):
        h = torch.einsum("bsd,df->bsf", x, w1)
        h = _silu(h)
        out = torch.einsum("bsf,fd->bsd", h, w2)
        return out

    x = A_x
    g = _sigmoid((x * gate_w).sum(-1, keepdims=True))
    a = _A_ref(x, A_wq, A_wk, A_wv, A_wo)
    b = _B_ref(x, B_w1, B_w2)
    return g * a + (1 - g) * b
```

```python
import struct

def f32bits(x):
    return struct.unpack("<I", struct.pack("<f", x))[0]

LOG2E = 1.4426950408889634

class E:
    def __init__(self):
        self.lines = []
        self.lg = []
        self.uid = 0
    def __call__(self, s):
        self.lines.append("    " + s)
    def label(self, l):
        self.lines.append(l + ":")
    def raw(self, s):
        self.lines.append(s)
    def comment(self, s):
        self.lines.append("    ; " + s)
    def newlabel(self, base):
        self.uid += 1
        return f"L_{base}_{self.uid}"
    def lds(self, s, tag):
        self(s)
        self.lg.append(tag)
        assert len(self.lg) <= 15, "too many outstanding LDS ops"
    def need(self, *tags):
        idx = -1
        for t in tags:
            if t in self.lg:
                idx = max(idx, len(self.lg) - 1 - self.lg[::-1].index(t))
        if idx >= 0:
            n = len(self.lg) - 1 - idx
            self(f"s_waitcnt lgkmcnt({n})")
            self.lg = self.lg[idx + 1:]
    def drain(self):
        if self.lg:
            self("s_waitcnt lgkmcnt(0)")
            self.lg = []
    def text(self):
        return "\n".join(self.lines) + "\n"

def vr(base, n=1):
    return f"v{base}" if n == 1 else f"v[{base}:{base+n-1}]"
def sr(base, n=1):
    return f"s{base}" if n == 1 else f"s[{base}:{base+n-1}]"

def mfma(e, d, a, b, c):
    cs = "0" if c is None else vr(c, 16)
    e(f"v_mfma_f32_32x32x16_bf16 {vr(d,16)}, {vr(a,4)}, {vr(b,4)}, {cs}")

def kernel_desc(name, nvgpr, nsgpr=102):
    acc = (nvgpr + 3) // 4 * 4
    return f""".section .rodata,"a"
.p2align 6
.amdhsa_kernel {name}
  .amdhsa_next_free_vgpr {nvgpr}
  .amdhsa_next_free_sgpr {nsgpr}
  .amdhsa_accum_offset {acc}
  .amdhsa_group_segment_fixed_size 0
  .amdhsa_kernarg_size 96
  .amdhsa_user_sgpr_count 2
  .amdhsa_user_sgpr_kernarg_segment_ptr 1
  .amdhsa_system_sgpr_workgroup_id_x 1
.end_amdhsa_kernel
"""
```

```python
import sys
from common import *

NAME = "gated_mix__grouped_kv_mqa__dense_activation_silu__prompt"
WS_KV = 0
WS_GATE = 128 * 1024
WS_Q = 1 << 20
WS_O = 3 << 20
WS_H = 5 << 20
WS_BP = 12 << 20
WS_SIZE = 32 << 20

S_X, S_WQ, S_WK, S_WV, S_WO, S_W1, S_W2, S_GATE, S_OUT, S_DBG, S_WS = 4, 6, 8, 10, 12, 16, 18, 20, 22, 24, 26
S_WAVE, S_RB, S_J = 28, 29, 30
SRD_WS, SRD_A, SRD_W = 32, 36, 40

def prologue(e, name):
    e.raw(f".globl {name}")
    e.raw(".p2align 8")
    e.raw(f".type {name},@function")
    e.label(name)
    e("s_cmp_ge_u32 s2, 256")
    e(f"s_cbranch_scc1 L_exit_{name}")
    e("s_load_dwordx16 s[4:19], s[0:1], 0")
    e("s_load_dwordx8 s[20:27], s[0:1], 64")
    e("v_lshrrev_b32 v1, 6, v0")
    e("v_and_b32 v0, 63, v0")
    e(f"s_and_b32 s{S_RB}, s2, 7")
    e(f"v_readfirstlane_b32 s{S_WAVE}, v1")
    e(f"s_lshl_b32 s{S_RB}, s{S_RB}, 1")
    e("s_bfe_u32 s3, s2, 0x10003")
    e(f"s_add_u32 s{S_RB}, s{S_RB}, s3")
    e(f"s_lshr_b32 s{S_J}, s2, 4")
    e("s_waitcnt lgkmcnt(0)")
    e(f"s_mov_b32 s{SRD_WS}, s{S_WS}")
    e(f"s_mov_b32 s{SRD_WS+1}, s{S_WS+1}")
    e(f"s_mov_b32 s{SRD_WS+2}, {WS_SIZE}")
    e(f"s_mov_b32 s{SRD_WS+3}, 0x20000")

def set_srd(e, srd, ptr, nrec):
    e(f"s_mov_b32 s{srd}, s{ptr}")
    e(f"s_mov_b32 s{srd+1}, s{ptr+1}")
    e(f"s_mov_b32 s{srd+2}, {nrec}")
    e(f"s_mov_b32 s{srd+3}, 0x20000")

NSLOT = 5
SLOT = 32768

def phaseA_loader(e):
    e(f"s_sub_u32 s44, s{S_WAVE}, 4")
    e(f"s_lshl_b32 s3, s{S_RB}, 17")
    e(f"s_add_u32 s{SRD_A}, s{S_X}, s3")
    e(f"s_addc_u32 s{SRD_A+1}, s{S_X+1}, 0")
    e(f"s_mov_b32 s{SRD_A+2}, 131072")
    e(f"s_mov_b32 s{SRD_A+3}, 0x20000")
    e("s_lshr_b32 s49, s44, 1")
    e("s_and_b32 s46, s44, 1")
    e("s_lshl_b32 s46, s46, 1")
    e(f"s_mov_b32 s{SRD_W+3}, 0x20000")
    lq, lf, lkv, ld = (e.newlabel(x) for x in ("ldq", "ldf", "ldkv", "lddone"))
    e("s_cmp_eq_u32 s49, 0")
    e(f"s_cbranch_scc1 {lq}")
    e(f"s_cmp_eq_u32 s{S_J}, 15")
    e(f"s_cbranch_scc1 {lkv}")
    e(f"s_mul_i32 s3, s{S_J}, 3")
    e("s_add_u32 s3, s3, s49")
    e("s_sub_u32 s3, s3, 1")
    e(f"s_mov_b32 s{SRD_W}, s{S_W1}")
    e(f"s_mov_b32 s{SRD_W+1}, s{S_W1+1}")
    e("s_cmp_lt_u32 s3, 43")
    e(f"s_cselect_b32 s{SRD_W+2}, {512*2752}, 0")
    e("s_mov_b32 s45, 2752")
    e("s_lshl_b32 s47, s3, 6")
    e(f"s_mov_b32 s48, {64*2752}")
    e(f"s_branch {ld}")
    e.label(lq)
    e(f"s_mov_b32 s{SRD_W}, s{S_WQ}")
    e(f"s_mov_b32 s{SRD_W+1}, s{S_WQ+1}")
    e(f"s_mov_b32 s{SRD_W+2}, {512*1024}")
    e("s_mov_b32 s45, 1024")
    e(f"s_lshl_b32 s47, s{S_J}, 6")
    e(f"s_mov_b32 s48, {64*1024}")
    e(f"s_branch {ld}")
    e.label(lkv)
    e("s_mov_b32 s45, 64")
    e("s_mov_b32 s46, 0")
    e("s_mov_b32 s47, 0")
    e("s_cmp_eq_u32 s44, 2")
    e(f"s_cselect_b32 s{SRD_W}, s{S_WK}, s{S_WV}")
    e(f"s_cselect_b32 s{SRD_W+1}, s{S_WK+1}, s{S_WV+1}")
    e(f"s_mov_b32 s{SRD_W+2}, 16384")
    e("s_mov_b32 s48, 2048")
    e("s_cmp_lt_u32 s44, 4")
    e(f"s_cbranch_scc1 {ld}")
    e(f"s_mov_b32 s{SRD_W}, s{S_GATE}")
    e(f"s_mov_b32 s{SRD_W+1}, s{S_GATE+1}")
    e("s_cmp_eq_u32 s44, 4")
    e(f"s_cselect_b32 s{SRD_W+2}, 1024, 0")
    e("s_mov_b32 s48, 128")
    e.label(ld)
    e("v_lshrrev_b32 v6, 3, v0")
    e("s_lshl_b32 s3, s44, 4")
    e("v_add_u32 v6, s3, v6")
    for i, dst in ((0, 2), (1, 3)):
        if i:
            e("v_add_u32 v6, 8, v6")
        e("v_bfe_u32 v7, v6, 1, 3")
        e("v_and_b32 v8, 7, v0")
        e("v_xor_b32 v7, v7, v8")
        e("v_lshlrev_b32 v7, 4, v7")
        e(f"v_lshl_add_u32 v{dst}, v6, 10, v7")
    e("v_lshrrev_b32 v6, 2, v0")
    e("s_lshl_b32 s3, s46, 4")
    e("v_add_u32 v6, s3, v6")
    e("v_and_b32 v8, 3, v0")
    e("v_lshlrev_b32 v8, 4, v8")
    e("v_add_u32 v8, s47, v8")
    e("v_mul_lo_u32 v7, v6, s45")
    e("v_add_u32 v4, v7, v8")
    e("s_lshl_b32 s3, s45, 4")
    e("v_add_u32 v5, s3, v4")
    e("s_lshl_b32 s50, s44, 11")
    e("s_add_u32 s51, s50, 16384")
    e("s_mov_b32 s52, 0")
    e("s_mov_b32 s53, 0")
    def issue(stage):
        base = (stage % NSLOT) * SLOT
        e(f"s_add_u32 m0, s50, {base}")
        e("s_nop 0")
        e(f"buffer_load_dwordx4 v2, {sr(SRD_A,4)}, s52 offen lds")
        e(f"s_add_u32 m0, s51, {base}")
        e("s_nop 0")
        e(f"buffer_load_dwordx4 v4, {sr(SRD_W,4)}, s53 offen lds")
        e(f"s_add_u32 m0, s50, {base+1024}")
        e("s_nop 0")
        e(f"buffer_load_dwordx4 v3, {sr(SRD_A,4)}, s52 offen lds")
        e(f"s_add_u32 m0, s51, {base+1024}")
        e("s_nop 0")
        e(f"buffer_load_dwordx4 v5, {sr(SRD_W,4)}, s53 offen lds")
        e("s_add_u32 s52, s52, 128")
        e("s_add_u32 s53, s53, s48")
    issued = 0
    for s in range(NSLOT):
        issue(s); issued += 1
    for s in range(8):
        e(f"s_waitcnt vmcnt({4*(issued - s - 1)})")
        e("s_barrier")
        if s >= 1 and issued < 8:
            issue(issued); issued += 1

def silu_pair(e, a, t):
    e(f"v_pk_mul_f32 {vr(t,2)}, {vr(a,2)}, s[54:55]")
    e(f"v_exp_f32 v{t}, v{t}")
    e(f"v_exp_f32 v{t+1}, v{t+1}")

def phaseA_compute(e, kv):
    ACC = 64; XF = 8; WF = 16; AX = 48; AW = 60; AKV = 2; AG = 5
    e("v_and_b32 v1, 31, v0")
    e("v_lshrrev_b32 v2, 5, v0")
    e("v_bfe_u32 v3, v1, 1, 3")
    e("v_xor_b32 v3, v3, v2")
    e("v_lshlrev_b32 v3, 4, v3")
    e(f"s_lshl_b32 s3, s{S_WAVE}, 5")
    e("v_add_u32 v1, s3, v1")
    e("v_lshl_add_u32 v3, v1, 7, v3")
    for b in range(3):
        for s in range(4):
            e(f"v_xor_b32 v{AX+4*b+s}, {32*s}, v3")
            if b:
                e(f"v_add_u32 v{AX+4*b+s}, {65536*b}, v{AX+4*b+s}")
    e("v_bfe_u32 v4, v0, 2, 2")
    e("v_lshl_add_u32 v4, v2, 3, v4")
    e("v_bfe_u32 v5, v0, 4, 1")
    e("v_and_b32 v6, 3, v0")
    e("v_lshlrev_b32 v6, 3, v6")
    e("v_lshl_add_u32 v7, v5, 5, v6")
    e(f"v_lshl_add_u32 v{AW}, v4, 6, v7")
    e(f"v_add_u32 v{AW+1}, 0x10000, v{AW}")
    e(f"v_add_u32 v{AW+2}, 0x20000, v{AW}")
    if kv:
        e("v_lshl_add_u32 v7, v5, 11, v6")
        e("v_lshlrev_b32 v5, 4, v2")
        e("v_lshl_add_u32 v2, v4, 5, v7")
        e("v_add_u32 v3, 0x10000, v2")
        e("v_add_u32 v4, 0x20000, v2")
        e("v_add_u32 v6, 0x10000, v5")
        e("v_add_u32 v7, 0x20000, v5")
    def reads(ks):
        st, s = divmod(ks, 4)
        base = (st % NSLOT) * SLOT
        b, off = divmod(base, 65536)
        p = ks % 2
        ops = [(f"ds_read_b128 {vr(XF+4*p,4)}, v{AX+4*b+s} offset:{off}", ("x", ks))]
        for t in range(4):
            w = WF + 16 * p + 4 * t
            if kv and t == 1:
                o = off + 16384 + 4096 + s * 512
                ops.append((f"ds_read_b64_tr_b16 {vr(w,2)}, v{AKV+b} offset:{o}", ("w", ks, t)))
                ops.append((f"ds_read_b64_tr_b16 {vr(w+2,2)}, v{AKV+b} offset:{o+128}", ("w", ks, t)))
            elif kv and t == 2:
                pass
            elif kv and t == 3:
                o = off + 16384 + 8192 + s * 32
                ops.append((f"ds_read_b128 {vr(w,4)}, v{AG+b} offset:{o}", ("w", ks, t)))
            else:
                o = off + 16384 + t * 4096 + s * 1024
                ops.append((f"ds_read_b64_tr_b16 {vr(w,2)}, v{AW+b} offset:{o}", ("w", ks, t)))
                ops.append((f"ds_read_b64_tr_b16 {vr(w+2,2)}, v{AW+b} offset:{o+256}", ("w", ks, t)))
        return ops
    e("s_barrier")
    for s, tag in reads(0):
        e.lds(s, tag)
    for ks in range(32):
        p = ks % 2
        nxt = reads(ks + 1) if ks + 1 < 32 else []
        if nxt and (ks + 1) % 4 == 0:
            e.drain()
            e("s_barrier")
        chunks = [nxt[:5], nxt[5:], [], []]
        for t in range(4):
            w = WF + 16 * p + 4 * t
            x = XF + 4 * p
            c = None if ks == 0 else ACC + 16 * t
            if kv and t == 2:
                e.need(("x", ks), ("w", ks, 1))
                mfma(e, ACC + 16 * t, x, WF + 16 * p + 4, c)
            else:
                e.need(("x", ks), ("w", ks, t))
                mfma(e, ACC + 16 * t, w, x, c)
            for s, tag in chunks[t]:
                e.lds(s, tag)
    e(f"s_mov_b32 s54, {f32bits(-LOG2E):#x}")
    e(f"s_mov_b32 s55, {f32bits(-LOG2E):#x}")
    e("s_mov_b32 s56, 1.0")
    e("s_mov_b32 s57, 1.0")
    e(f"s_mov_b32 s58, {f32bits(0.25*LOG2E):#x}")
    e(f"s_mov_b32 s59, {f32bits(0.25*LOG2E):#x}")
    e(f"s_lshl_b32 s60, s{S_RB}, 2")
    e(f"s_add_u32 s60, s60, s{S_WAVE}")
    e("v_lshlrev_b32 v1, 4, v0")
    e("s_lshl_b32 s61, s60, 5")
    e(f"s_lshl_b32 s3, s{S_J}, 1")
    e("s_add_u32 s61, s61, s3")
    e("s_lshl_b32 s61, s61, 10")
    e(f"s_add_u32 s61, s61, {WS_Q}")
    e("s_nop 7")
    for i in range(8):
        e(f"v_pk_mul_f32 {vr(ACC+2*i,2)}, {vr(ACC+2*i,2)}, s[58:59]")
    for i in range(8):
        e(f"v_cvt_pk_bf16_f32 v{8+i}, v{ACC+2*i}, v{ACC+2*i+1}")
    e(f"buffer_store_dwordx4 {vr(8,4)}, v1, {sr(SRD_WS,4)}, s61 offen")
    e(f"buffer_store_dwordx4 {vr(12,4)}, v1, {sr(SRD_WS,4)}, s61 offen offset:1024")
    if kv:
        e("s_lshl_b32 s61, s60, 11")
        for i in range(4):
            e(f"v_cvt_pk_bf16_f32 v{16+i}, v{ACC+16+2*i}, v{ACC+16+2*i+1}")
        e(f"buffer_store_dwordx4 {vr(16,4)}, v1, {sr(SRD_WS,4)}, s61 offen")
        for i in range(8):
            e(f"v_cvt_pk_bf16_f32 v{20+i}, v{ACC+32+2*i}, v{ACC+32+2*i+1}")
        e("s_mov_b32 exec_lo, 0xffff0000")
        e("s_mov_b32 exec_hi, 0xffff0000")
        e(f"buffer_store_dwordx4 {vr(20,4)}, v1, {sr(SRD_WS,4)}, s61 offen offset:{1024-256}")
        e(f"buffer_store_dwordx4 {vr(24,4)}, v1, {sr(SRD_WS,4)}, s61 offen offset:1024")
        e("s_mov_b32 exec_lo, -1")
        e("s_mov_b32 exec_hi, 0")
        e("v_lshlrev_b32 v2, 2, v0")
        e("s_lshl_b32 s61, s60, 7")
        e(f"s_add_u32 s61, s61, {WS_GATE}")
        e(f"buffer_store_dword v{ACC+48}, v2, {sr(SRD_WS,4)}, s61 offen")
        e("s_mov_b64 exec, -1")
    else:
        e("s_mul_i32 s61, s60, 86")
        e(f"s_mul_i32 s62, s{S_J}, 6")
        e("s_add_u32 s61, s61, s62")
        e("s_lshl_b32 s61, s61, 10")
        e(f"s_add_u32 s61, s61, {WS_H}")
        lend = e.newlabel("aend")
        for t in range(1, 4):
            if t == 2:
                e(f"s_cmp_eq_u32 s{S_J}, 14")
                e(f"s_cbranch_scc1 {lend}")
            a = ACC + 16 * t
            T = 16
            for i in range(8):
                e(f"v_pk_mul_f32 {vr(T+2*i,2)}, {vr(a+2*i,2)}, s[54:55]")
            for i in range(16):
                e(f"v_exp_f32 v{T+i}, v{T+i}")
            for i in range(8):
                e(f"v_pk_add_f32 {vr(T+2*i,2)}, {vr(T+2*i,2)}, s[56:57]")
            for i in range(16):
                e(f"v_rcp_f32 v{T+i}, v{T+i}")
            for i in range(8):
                e(f"v_pk_mul_f32 {vr(T+2*i,2)}, {vr(T+2*i,2)}, {vr(a+2*i,2)}")
            P = 32 + 8 * (t % 2)
            for i in range(8):
                e(f"v_cvt_pk_bf16_f32 v{P+i}, v{T+2*i}, v{T+2*i+1}")
            o = (t - 1) * 2048
            if o + 1024 > 4095:
                e("s_add_u32 s61, s61, 4096")
                o -= 4096
            e(f"buffer_store_dwordx4 {vr(P,4)}, v1, {sr(SRD_WS,4)}, s61 offen offset:{o}")
            e(f"buffer_store_dwordx4 {vr(P+4,4)}, v1, {sr(SRD_WS,4)}, s61 offen offset:{o+1024}")
        e.label(lend)

def gen_k1(e, name):
    prologue(e, name)
    lc, lk = e.newlabel("comp"), e.newlabel("compkv")
    e(f"s_cmp_lt_u32 s{S_WAVE}, 4")
    e(f"s_cbranch_scc1 {lc}")
    phaseA_loader(e)
    e("s_endpgm")
    e.label(lc)
    e(f"s_cmp_eq_u32 s{S_J}, 15")
    e(f"s_cbranch_scc1 {lk}")
    phaseA_compute(e, False)
    e("s_endpgm")
    e.label(lk)
    phaseA_compute(e, True)
    e.label(f"L_exit_{name}")
    e("s_endpgm")

def attention(e):
    Q = 4; KF = 8; VF = 12
    P = 28
    AD = 2; G = 3
    S = [48, 64]; O = 80; C = 96
    ONES = 0x3F803F80
    e("v_lshlrev_b32 v2, 4, v0")
    e(f"s_and_b32 s44, s{S_WAVE}, 3")
    e(f"s_lshl_b32 s3, s{S_RB}, 2")
    e("s_add_u32 s44, s44, s3")
    e(f"s_lshr_b32 s45, s{S_WAVE}, 2")
    e(f"s_lshl_b32 s3, s{S_J}, 1")
    e("s_add_u32 s45, s45, s3")
    e("s_lshl_b32 s46, s44, 5")
    e("s_add_u32 s46, s46, s45")
    e("s_lshl_b32 s46, s46, 10")
    e(f"s_add_u32 s47, s46, {WS_Q}")
    e(f"buffer_load_dwordx4 {vr(Q,4)}, v2, {sr(SRD_WS,4)}, s47 offen")
    e("v_and_b32 v1, 31, v0")
    e("v_lshlrev_b32 v1, 2, v1")
    e("s_lshl_b32 s47, s44, 7")
    e(f"s_add_u32 s47, s47, {WS_GATE}")
    e(f"buffer_load_dword v{G}, v1, {sr(SRD_WS,4)}, s47 offen")
    e(f"s_lshl_b32 s47, s{S_WAVE}, 11")
    for i in range(8):
        e("s_mov_b32 m0, s47")
        e("s_nop 0")
        e(f"buffer_load_dwordx4 v2, {sr(SRD_WS,4)}, s47 offen lds")
        e(f"buffer_load_dwordx4 v2, {sr(SRD_WS,4)}, s47 offen offset:1024 lds")
        if i < 7:
            e("s_add_u32 s47, s47, 16384")
    for i in range(16):
        e(f"v_mov_b32 v{VF+i}, {ONES:#x}")
    e("s_mov_b32 s50, 0xffff")
    e("s_mov_b32 s51, 0xffff")
    e("s_mov_b32 s49, 0")
    e("s_waitcnt vmcnt(12)")
    e("s_barrier")
    e(f"ds_read_b128 {vr(KF,4)}, v{AD}")
    e("s_waitcnt lgkmcnt(0)")
    mfma(e, S[0], KF, Q, None)
    e("s_nop 15")
    M = 36
    e(f"v_max3_f32 v{M}, v{S[0]}, v{S[0]+1}, v{S[0]+2}")
    for i in range(3, 15, 2):
        e(f"v_max3_f32 v{M}, v{M}, v{S[0]+i}, v{S[0]+i+1}")
    e(f"v_max_f32 v{M}, v{M}, v{S[0]+15}")
    lre = e.newlabel("restart")
    e.label(lre)
    e(f"v_mov_b32 v{M+1}, v{M}")
    e("s_nop 1")
    e(f"v_permlane32_swap_b32 v{M}, v{M+1}")
    e("s_nop 1")
    e(f"v_max_f32 v{M}, v{M}, v{M+1}")
    for i in range(16):
        e(f"v_sub_f32 v{C+i}, 0, v{M}")
    for i in range(16):
        e(f"v_mov_b32 v{O+i}, 0")
    for i in range(4, 8):
        e(f"v_mov_b32 v{P+i}, 0")
    e("v_lshlrev_b32 v2, 4, v0")
    mfma(e, S[0], KF, Q, C)
    e("s_mov_b64 exec, s[50:51]")
    e(f"ds_read_b128 {vr(VF,4)}, v{AD} offset:1024")
    e(f"ds_read_b128 {vr(VF+4,4)}, v{AD} offset:1280")
    e("s_mov_b64 exec, -1")
    e(f"ds_read_b128 {vr(KF,4)}, v{AD} offset:2048")
    e("s_mov_b32 s48, 0")
    e("s_nop 7")
    e("s_nop 3")
    e(f"v_exp_f32 v{S[0]}, v{S[0]}")
    e(f"v_exp_f32 v{S[0]+1}, v{S[0]+1}")
    ll = e.newlabel("aloop")
    e.raw(".p2align 6")
    e.label(ll)
    for i in range(8):
        s = S[i % 2]; n = S[(i + 1) % 2]
        vc = VF + 8 * (i % 2); vn = VF + 8 * ((i + 1) % 2)
        ex = lambda k: e(f"v_exp_f32 v{s+k}, v{s+k}")
        cv = lambda k: e(f"v_cvt_pk_bf16_f32 v{P+k}, v{s+2*k}, v{s+2*k+1}")
        mfma(e, O, vn + 4, P + 4, O)
        ex(2)
        e("s_mov_b64 exec, s[50:51]")
        e(f"ds_read_b128 {vr(vn,4)}, v{AD} offset:{(i+1)*2048+1024}")
        e(f"ds_read_b128 {vr(vn+4,4)}, v{AD} offset:{(i+1)*2048+1280}")
        e("s_mov_b64 exec, -1")
        for k in range(3, 8): ex(k)
        cv(0)
        e("s_waitcnt lgkmcnt(2)")
        mfma(e, n, KF, Q, C)
        cv(1)
        e(f"ds_read_b128 {vr(KF,4)}, v{AD} offset:{(i+2)*2048}")
        cv(2); cv(3)
        for k in range(8, 13): ex(k)
        mfma(e, O, vc, P, O)
        for k in range(13, 16): ex(k)
        cv(4); cv(5); cv(6); cv(7)
        if i == 7:
            e(f"v_add_u32 v{AD}, 0x4000, v{AD}")
        e(f"v_exp_f32 v{n}, v{n}")
        e(f"v_exp_f32 v{n+1}, v{n+1}")
    lnb = e.newlabel("nobar")
    e("s_add_u32 s48, s48, 1")
    e("s_add_u32 s3, s48, s49")
    e("s_cmp_lg_u32 s3, 1")
    e(f"s_cbranch_scc1 {lnb}")
    e("s_waitcnt vmcnt(0)")
    e("s_barrier")
    e.label(lnb)
    e("s_cmp_lt_u32 s48, 8")
    e(f"s_cbranch_scc1 {ll}")
    mfma(e, O, VF + 8 + 4, P + 4, O)
    e("s_waitcnt lgkmcnt(0)")
    e(f"v_mul_f32 v{G+34}, {f32bits(-LOG2E):#x}, v{G}")
    e(f"v_exp_f32 v{G+34}, v{G+34}")
    e("s_nop 0")
    e(f"v_add_f32 v{G+34}, 1.0, v{G+34}")
    e("s_nop 12")
    lok = e.newlabel("ok")
    e(f"v_cmp_nlt_f32 vcc, v{O+8}, v{O+8}")
    e(f"s_mov_b32 s3, {f32bits(2.0**60):#x}")
    e(f"v_cmp_nge_f32 vcc, s3, v{O+8}")
    e("s_cmp_lg_u32 s49, 0")
    e(f"s_cbranch_scc1 {lok}")
    e(f"s_cbranch_vccz {lok}")
    e("s_mov_b32 s49, 8")
    e("v_lshlrev_b32 v2, 4, v0")
    e(f"v_mov_b32 v{M}, 0xff800000")
    e("s_mov_b32 s48, 0")
    lf = e.newlabel("fb")
    e.label(lf)
    e(f"ds_read_b128 {vr(KF,4)}, v{AD}")
    e("s_waitcnt lgkmcnt(0)")
    mfma(e, S[0], KF, Q, None)
    e(f"v_add_u32 v{AD}, 0x800, v{AD}")
    e("s_nop 15")
    for i in range(0, 16, 2):
        e(f"v_max3_f32 v{M}, v{M}, v{S[0]+i}, v{S[0]+i+1}")
    e("s_add_u32 s48, s48, 1")
    e("s_cmp_lt_u32 s48, 64")
    e(f"s_cbranch_scc1 {lf}")
    e("v_lshlrev_b32 v2, 4, v0")
    e("s_nop 0")
    e(f"ds_read_b128 {vr(KF,4)}, v{AD}")
    for i in range(16):
        e(f"v_mov_b32 v{VF+i}, {ONES:#x}")
    e("s_waitcnt lgkmcnt(0)")
    e(f"s_branch {lre}")
    e.label(lok)
    e(f"v_mul_f32 v{G+34}, v{G+34}, v{O+8}")
    e(f"v_rcp_f32 v{G+34}, v{G+34}")
    e("s_nop 0")
    for i in range(8):
        e(f"v_mul_f32 v{O+i}, v{O+i}, v{G+34}")
    for i in range(4):
        e(f"v_cvt_pk_bf16_f32 v{P+i}, v{O+2*i}, v{O+2*i+1}")
    e("v_lshlrev_b32 v2, 4, v0")
    e(f"s_add_u32 s47, s46, {WS_O}")
    e(f"buffer_store_dwordx4 {vr(P,4)}, v2, {sr(SRD_WS,4)}, s47 offen")

GACC = 64
def gemm_setup(e, g_sgpr, ring_base):
    e("v_lshrrev_b32 v8, 3, v0")
    e("v_and_b32 v9, 7, v0")
    e("v_bfe_u32 v10, v0, 4, 1")
    e("v_lshlrev_b32 v10, 2, v10")
    e("v_xor_b32 v9, v9, v10")
    e("v_lshlrev_b32 v9, 4, v9")
    e(f"s_lshl_b32 s3, s{g_sgpr}, 4")
    e("v_add_u32 v8, s3, v8")
    e("v_lshl_add_u32 v4, v8, 10, v9")
    e(f"s_lshr_b32 s3, s{S_J}, 1")
    e("s_lshl_b32 s3, s3, 7")
    e("v_add_u32 v4, s3, v4")
    e("v_add_u32 v5, 0x2000, v4")
    e("v_lshrrev_b32 v8, 5, v0")
    e("v_bfe_u32 v9, v0, 2, 2")
    e("v_lshl_add_u32 v8, v8, 2, v9")
    e("v_lshlrev_b32 v8, 7, v8")
    e("v_bfe_u32 v9, v0, 3, 1")
    e("v_lshl_add_u32 v8, v9, 6, v8")
    e("v_bfe_u32 v9, v0, 4, 1")
    e("v_lshl_add_u32 v8, v9, 5, v8")
    e("v_and_b32 v9, 3, v0")
    e("v_lshl_add_u32 v8, v9, 3, v8")
    e(f"s_lshl_b32 s60, s{g_sgpr}, 13")
    e(f"s_add_u32 s60, s60, {ring_base}")
    e("v_add_u32 v6, s60, v8")
    e("v_xor_b32 v7, 64, v6")

def gemm_bsetup(e, g_sgpr, wsbase, nks):
    e(f"s_and_b32 s3, s{S_J}, 1")
    e("s_lshl_b32 s3, s3, 1")
    e(f"s_lshl_b32 s61, s{S_RB}, 2")
    e("s_add_u32 s61, s61, s3")
    e(f"s_mul_i32 s3, s61, {nks}")
    e(f"s_add_u32 s3, s3, s{g_sgpr}")
    e("s_lshl_b32 s3, s3, 10")
    e(f"s_add_u32 s3, s3, {wsbase}")
    e("v_lshlrev_b32 v2, 4, v0")
    e("v_add_u32 v2, s3, v2")
    e(f"v_add_u32 v3, {nks*1024}, v2")

def gemm_issue(e, slot):
    HB = 16 + 8 * slot
    e(f"s_add_u32 m0, s60, {slot*2048}")
    e(f"buffer_load_dwordx4 {vr(HB,4)}, v2, {sr(SRD_WS,4)}, s62 offen")
    e(f"buffer_load_dwordx4 v4, {sr(SRD_W,4)}, s63 offen lds")
    e(f"s_add_u32 m0, s60, {slot*2048+1024}")
    e(f"buffer_load_dwordx4 {vr(HB+4,4)}, v3, {sr(SRD_WS,4)}, s62 offen")
    e(f"buffer_load_dwordx4 v5, {sr(SRD_W,4)}, s63 offen lds")
    e("s_add_u32 s62, s62, 4096")
    e("s_add_u32 s63, s63, 65536")

def gemm_prefetch(e):
    e("s_mov_b32 s62, 0")
    e("s_mov_b32 s63, 0")
    for s in range(3):
        gemm_issue(e, s)

def gemm_loop(e, cnt_sgpr):
    WFR = 8
    ll, le = e.newlabel("gloop"), e.newlabel("gend")
    e.label(ll)
    for slot in range(4):
        HB = 16 + 8 * slot
        e("s_waitcnt vmcnt(8)")
        for nt in range(2):
            for u in range(2):
                e(f"ds_read_b64_tr_b16 {vr(WFR+4*nt+2*u,2)}, v{6+nt} offset:{slot*2048+u*1024}")
        gemm_issue(e, (slot + 3) % 4)
        e("s_waitcnt lgkmcnt(2)")
        for nt in range(2):
            if nt == 1:
                e("s_waitcnt lgkmcnt(0)")
            for rt in range(2):
                a = GACC + 32 * nt + 16 * rt
                mfma(e, a, WFR + 4 * nt, HB + 4 * rt, a)
        e(f"s_sub_u32 s{cnt_sgpr}, s{cnt_sgpr}, 1")
        e(f"s_cmp_eq_u32 s{cnt_sgpr}, 0")
        if slot < 3:
            e(f"s_cbranch_scc1 {le}")
        else:
            e(f"s_cbranch_scc0 {ll}")
    e.label(le)

def gen_k2(e, name):
    prologue(e, name)
    lg = e.newlabel("gemm")
    e(f"s_cmp_ge_u32 s{S_WAVE}, 8")
    e(f"s_cbranch_scc1 {lg}")
    attention(e)
    e("s_endpgm")
    e.label(lg)
    e(f"s_sub_u32 s44, s{S_WAVE}, 8")
    set_srd(e, SRD_W, S_W2, 1376 * 1024)
    gemm_setup(e, 44, 131072)
    gemm_bsetup(e, 44, WS_H, 86)
    e("v_and_b32 v1, 31, v0")
    e("v_lshlrev_b32 v1, 2, v1")
    e("s_lshl_b32 s47, s61, 7")
    e(f"s_add_u32 s47, s47, {WS_GATE}")
    e(f"buffer_load_dword v48, v1, {sr(SRD_WS,4)}, s47 offen")
    e(f"buffer_load_dword v50, v1, {sr(SRD_WS,4)}, s47 offen offset:128")
    gemm_prefetch(e)
    for i in range(64):
        e(f"v_mov_b32 v{GACC+i}, 0")
    e("s_cmp_lt_u32 s44, 2")
    e("s_cselect_b32 s45, 22, 21")
    e("s_barrier")
    e("s_barrier")
    gemm_loop(e, 45)
    for r in (48, 50):
        e(f"v_mul_f32 v{r}, {f32bits(LOG2E):#x}, v{r}")
        e(f"v_exp_f32 v{r}, v{r}")
        e("s_nop 0")
        e(f"v_add_f32 v{r}, 1.0, v{r}")
        e(f"v_rcp_f32 v{r}, v{r}")
        e("s_nop 0")
        e(f"v_mov_b32 v{r+1}, v{r}")
    e("s_nop 7")
    for nt in range(2):
        for rt in range(2):
            a = GACC + 32 * nt + 16 * rt
            for i in range(8):
                e(f"v_pk_mul_f32 {vr(a+2*i,2)}, {vr(a+2*i,2)}, {vr(48+2*rt,2)}")
    e("s_lshl_b32 s47, s2, 2")
    e("s_add_u32 s47, s47, s44")
    e("s_lshl_b32 s47, s47, 14")
    e(f"s_add_u32 s47, s47, {WS_BP}")
    e("v_lshlrev_b32 v1, 4, v0")
    for i in range(16):
        if i and i % 4 == 0:
            e("s_add_u32 s47, s47, 4096")
        e(f"buffer_store_dwordx4 {vr(GACC+4*i,4)}, v1, {sr(SRD_WS,4)}, s47 offen offset:{(i%4)*1024}")
    e.label(f"L_exit_{name}")
    e("s_endpgm")

def reduce_store(e, g_sgpr, red_base):
    e("v_lshlrev_b32 v1, 4, v0")
    e(f"s_lshl_b32 s3, s{g_sgpr}, 12")
    e(f"s_add_u32 s3, s3, {red_base}")
    e("v_add_u32 v8, s3, v1")
    e("s_nop 12")
    for q in range(4):
        a = GACC + 16 * q
        for rg in range(4):
            e(f"ds_write_b128 v8, {vr(a+4*rg,4)} offset:{q*16384+rg*1024}")
    e(f"s_lshl_b32 s3, s{g_sgpr}, 14")
    e(f"s_add_u32 s3, s3, {red_base}")
    e("v_add_u32 v8, s3, v1")
    e("s_waitcnt lgkmcnt(0)")
    e("s_barrier")
    for src in range(4):
        for rg in range(4):
            e(f"ds_read_b128 {vr(GACC+16*src+4*rg,4)}, v8 offset:{src*4096+rg*1024}")
        if src == 2:
            e("s_waitcnt lgkmcnt(4)")
    e("s_waitcnt lgkmcnt(0)")
    for i in range(8):
        e(f"v_pk_add_f32 {vr(GACC+2*i,2)}, {vr(GACC+2*i,2)}, {vr(GACC+16+2*i,2)}")
        e(f"v_pk_add_f32 {vr(GACC+32+2*i,2)}, {vr(GACC+32+2*i,2)}, {vr(GACC+48+2*i,2)}")
    for i in range(8):
        e(f"v_pk_add_f32 {vr(GACC+2*i,2)}, {vr(GACC+2*i,2)}, {vr(GACC+32+2*i,2)}")
    for i in range(8):
        e(f"v_cvt_pk_bf16_f32 v{16+i}, v{GACC+2*i}, v{GACC+2*i+1}")
    e("s_nop 1")
    e("v_permlane32_swap_b32 v16, v18")
    e("v_permlane32_swap_b32 v17, v19")
    e("v_permlane32_swap_b32 v20, v22")
    e("v_permlane32_swap_b32 v21, v23")
    set_srd(e, SRD_A, S_OUT, 2048 * 1024)
    e(f"s_and_b32 s3, s{g_sgpr}, 1")
    e("s_add_u32 s3, s3, s61")
    e("s_lshl_b32 s3, s3, 15")
    e(f"s_lshr_b32 s46, s{S_J}, 1")
    e("s_lshl_b32 s46, s46, 7")
    e("s_add_u32 s3, s3, s46")
    e(f"s_lshr_b32 s46, s{g_sgpr}, 1")
    e("s_lshl_b32 s46, s46, 6")
    e("s_add_u32 s3, s3, s46")
    e("v_and_b32 v1, 31, v0")
    e("v_lshlrev_b32 v1, 10, v1")
    e("v_lshrrev_b32 v8, 5, v0")
    e("v_lshl_add_u32 v1, v8, 4, v1")
    e(f"buffer_store_dwordx4 {vr(16,4)}, v1, {sr(SRD_A,4)}, s3 offen")
    e(f"buffer_store_dwordx4 {vr(20,4)}, v1, {sr(SRD_A,4)}, s3 offen offset:32")

def gen_k3(e, name):
    prologue(e, name)
    e(f"s_mov_b32 s44, s{S_WAVE}")
    set_srd(e, SRD_W, S_WO, 512 * 1024)
    gemm_setup(e, 44, 65536)
    gemm_bsetup(e, 44, WS_O, 32)
    e("s_lshl_b32 s47, s2, 2")
    e("s_add_u32 s47, s47, s44")
    e("s_lshl_b32 s47, s47, 14")
    e(f"s_add_u32 s47, s47, {WS_BP}")
    e("v_lshlrev_b32 v1, 4, v0")
    for i in range(16):
        if i and i % 4 == 0:
            e("s_add_u32 s47, s47, 4096")
        e(f"buffer_load_dwordx4 {vr(GACC+4*i,4)}, v1, {sr(SRD_WS,4)}, s47 offen offset:{(i%4)*1024}")
    gemm_prefetch(e)
    e("s_mov_b32 s45, 8")
    gemm_loop(e, 45)
    reduce_store(e, 44, 0)
    e.label(f"L_exit_{name}")
    e("s_endpgm")

def main(out):
    e = E()
    hdr = open("cdna_kernels/" + NAME + ".s.ref").read().split("; Override launch")[0]
    e.raw(hdr.rstrip("\n"))
    e.raw("; @launch kernel=gm_a_kernel grid=(256,1,1) block=(768,1,1) lds=163840")
    e.raw("; @launch kernel=gm_b_kernel grid=(256,1,1) block=(768,1,1) lds=163840")
    e.raw("; @launch kernel=gm_c_kernel grid=(256,1,1) block=(256,1,1) lds=98304")
    e.raw('.amdgcn_target "amdgcn-amd-amdhsa--gfx950"')
    e.raw(".text")
    gen_k1(e, "gm_a_kernel")
    gen_k2(e, "gm_b_kernel")
    gen_k3(e, "gm_c_kernel")
    t = e.text()
    for n in ("gm_a_kernel", "gm_b_kernel", "gm_c_kernel"):
        t += kernel_desc(n, 128)
    open(out, "w").write(t)

if __name__ == "__main__":
    main(sys.argv[1] if len(sys.argv) > 1 else "cdna_kernels/" + NAME + ".s")
```
